```python
import torch

def _softmax(x, axis=-1):
    return torch.softmax(x, dim=axis)
def _gelu(x):
    return torch.nn.functional.gelu(x, approximate="tanh")
def _silu(x):
    return torch.nn.functional.silu(x)
def _sigmoid(x):
    return torch.sigmoid(x)
def _layernorm(x, axis=-1, eps=1e-5):
    m = x.mean(dim=axis, keepdim=True)
    v = x.var(dim=axis, keepdim=True, unbiased=False)
    return (x - m) / torch.sqrt(v + eps)
def _scatter_add(tgt, idx, src, axis=0):
    return tgt.clone().index_add_(axis, idx, src)
def _segment_sum(src, seg, n):
    out = torch.zeros((n,) + src.shape[1:], dtype=src.dtype)
    return out.index_add_(0, seg, src)
def _pad(x, pw):
    flat = tuple(v for pair in reversed(pw) for v in pair)
    return torch.nn.functional.pad(x, flat)

kernel_name = 'parallel_sum__softmax_full_mha__moe_arch_mod__prompt'

def setup_inputs():

    _w = (lambda a: (lambda t: t.to(torch.bfloat16) if t.is_floating_point() else t)(torch.as_tensor(a)))
    def _A_setup():
        B, S, D = 1, 2048, 512
        return {
            "x": _w((lambda *s: torch.randn(*s, dtype=torch.bfloat16) * 0.05)(B, S, D)),
            "wqkv": _w((lambda *s: torch.randn(*s, dtype=torch.bfloat16) * 0.2)(D, 3 * D)),
            "wo": _w((lambda *s: torch.randn(*s, dtype=torch.bfloat16) * 0.2)(D, D)),
        }
    _A_in = _A_setup()

    def _B_setup():
        B, S, D, F, C = 1, 2048, 512, 1376, 8
        return {
            "x": _w((lambda *s: torch.randn(*s, dtype=torch.bfloat16) * 0.05)(B, S, D)),
            "w_r": _w((lambda *s: torch.randn(*s, dtype=torch.bfloat16) * 1.6)(D)),
            "w_gate": _w((lambda *s: torch.randn(*s, dtype=torch.bfloat16) * 0.2)(D, F)),
            "w_up": _w((lambda *s: torch.randn(*s, dtype=torch.bfloat16) * 0.2)(D, F)),
            "w_down": _w((lambda *s: torch.randn(*s, dtype=torch.bfloat16) * 0.2)(F, D)),
        }
    _B_in = _B_setup()

    return {
        "A_x": _A_in["x"],
        "A_wqkv": _A_in["wqkv"],
        "A_wo": _A_in["wo"],
        "B_x": _B_in["x"],
        "B_w_r": _B_in["w_r"],
        "B_w_gate": _B_in["w_gate"],
        "B_w_up": _B_in["w_up"],
        "B_w_down": _B_in["w_down"],
    }

def reference(A_x, A_wqkv, A_wo, B_x, B_w_r, B_w_gate, B_w_up, B_w_down):
    def _A_ref(x, wqkv, wo):
        B, S, D = x.shape
        H = 32; Dh = D // H
        qkv = (lambda x, *d: x.permute(*d))((x @ wqkv).reshape(B, S, 3, H, Dh), 2, 0, 3, 1, 4)
        q, k, v = qkv[0], qkv[1], qkv[2]
        scale = Dh ** -0.5
        scores = torch.einsum("bhqd,bhkd->bhqk", q, k) * scale
        p = _softmax(scores, axis=-1)
        o = torch.einsum("bhqk,bhkd->bhqd", p, v)
        return (lambda x, *d: x.permute(*d))(o, 0, 2, 1, 3).reshape(B, S, D) @ wo

    def _B_ref(x, w_r, w_gate, w_up, w_down):
        B, S, D = x.shape
        C = 8
        r = x @ w_r
        idx = torch.argsort(-r, axis=-1)[:, :C]
        idx_e = (lambda x, n, axis: torch.repeat_interleave(x, n, dim=axis))(idx.reshape(B, C, 1), D, axis=2)
        x_sel = (lambda x, i, axis: torch.take_along_dim(x, i, dim=axis))(x, idx_e, axis=1)
        g = _silu(x_sel @ w_gate)
        u = x_sel @ w_up
        y = (g * u) @ w_down
        r_sel = _sigmoid((lambda x, i, axis: torch.take_along_dim(x, i, dim=axis))(r, idx, axis=1))
        y = y * r_sel.reshape(B, C, 1)
        b_off = (torch.arange(B) * S).reshape(B, 1)
        flat_idx = (idx + b_off).reshape(B * C)
        zero = (x * 0.0).reshape(B * S, D)
        upd = _scatter_add(zero, flat_idx, y.reshape(B * C, D), axis=0)
        return x + upd.reshape(B, S, D)

    x = A_x
    xn = _layernorm(x, axis=-1)
    return x + _A_ref(xn, A_wqkv, A_wo) + _B_ref(xn, B_w_r, B_w_gate, B_w_up, B_w_down)
```

```python
S, D, H, DH, F = 2048, 512, 32, 16, 1376
NAME = "parallel_sum__softmax_full_mha__moe_arch_mod__prompt"
KA_X, KA_WQKV, KA_WO, KA_BX, KA_WR, KA_WG, KA_WU, KA_WD, KA_OUT, KA_DBG, KA_WS = [8*i for i in range(11)]
WS_XN  = 0x000000
WS_Q   = 0x200000
WS_K   = 0x400000
WS_VT  = 0x600000
WS_O   = 0x800000
WS_R   = 0xA00000
WS_H   = 0xA10000
WS_IDX = 0xA40000
WS_UPD = 0xA41000

import re as _re
class Asm:
    def __init__(self):
        self.lines = []
    def __call__(self, s):
        for ln in s.strip("\n").split("\n"):
            m = _re.search(r"offset:(\d+)", ln)
            if m:
                lim = 4095 if ln.strip().startswith("buffer_") else 65535
                assert int(m.group(1)) <= lim, f"offset too large: {ln}"
            self.lines.append(ln if ln.startswith((".", ";")) or ln.rstrip().endswith(":") else "    " + ln.strip())
    def text(self):
        return "\n".join(self.lines) + "\n"

def srd(a, sreg, base_lo, base_hi, nbytes, off=0):
    if off:
        a(f"s_add_u32 s{sreg}, s{base_lo}, {off}")
        a(f"s_addc_u32 s{sreg+1}, s{base_hi}, 0")
        a(f"s_and_b32 s{sreg+1}, s{sreg+1}, 0xffff")
    else:
        a(f"s_mov_b32 s{sreg}, s{base_lo}")
        a(f"s_and_b32 s{sreg+1}, s{base_hi}, 0xffff")
    a(f"s_mov_b32 s{sreg+2}, {nbytes}")
    a(f"s_mov_b32 s{sreg+3}, 0x00020000")

def allreduce_add(a, v, t):
    for r in (8, 4, 2, 1):
        a("s_nop 1")
        a(f"v_add_f32_dpp v{v}, v{v}, v{v} row_ror:{r} row_mask:0xf bank_mask:0xf")
    a(f"v_mov_b32 v{t}, v{v}")
    a("s_nop 1")
    a(f"v_permlane16_swap_b32 v{v}, v{t}")
    a(f"v_add_f32 v{v}, v{v}, v{t}")
    a(f"v_mov_b32 v{t}, v{v}")
    a("s_nop 1")
    a(f"v_permlane32_swap_b32 v{v}, v{t}")
    a(f"v_add_f32 v{v}, v{v}, v{t}")

def kernel_header(a, name):
    a(f".globl {name}")
    a(".p2align 8")
    a(f".type {name},@function")
    a(f"{name}:")

def kernel_footer(a, name, vgpr, sgpr=102, agpr=0):
    acc = min(256, (vgpr + 3)//4*4)
    a("s_endpgm")
    a('.section .rodata,"a"')
    a(".p2align 6")
    a(f".amdhsa_kernel {name}")
    a(f"  .amdhsa_next_free_vgpr {acc + agpr if agpr else vgpr}")
    a(f"  .amdhsa_next_free_sgpr {sgpr}")
    a(f"  .amdhsa_accum_offset {acc}")
    a("  .amdhsa_group_segment_fixed_size 0")
    a("  .amdhsa_kernarg_size 88")
    a("  .amdhsa_user_sgpr_count 2")
    a("  .amdhsa_user_sgpr_kernarg_segment_ptr 1")
    a("  .amdhsa_system_sgpr_workgroup_id_x 1")
    a(".end_amdhsa_kernel")
    a(".text")
```

```python
from common import *
K0 = "ln_kernel"
K0_GRID = 512
def gen_k0(a):
    kernel_header(a, K0)
    a(f"s_cmp_ge_u32 s2, {K0_GRID}")
    a("s_cbranch_scc1 L_k0_end")
    a(f"s_load_dwordx2 s[4:5], s[0:1], {KA_X}")
    a(f"s_load_dwordx2 s[6:7], s[0:1], {KA_WR}")
    a(f"s_load_dwordx2 s[8:9], s[0:1], {KA_WS}")
    a("v_lshrrev_b32 v1, 6, v0")
    a("v_and_b32 v2, 63, v0")
    a("s_lshl_b32 s3, s2, 2")
    a("v_add_u32 v3, s3, v1")
    a("v_lshlrev_b32 v1, 10, v3")
    a("v_lshlrev_b32 v2, 4, v2")
    a("v_add_u32 v1, v1, v2")
    a("s_waitcnt lgkmcnt(0)")
    srd(a, 12, 4, 5, S*D*2)
    srd(a, 16, 6, 7, D*2)
    srd(a, 20, 8, 9, S*D*2, WS_XN)
    srd(a, 24, 8, 9, S*4, WS_R)
    a("buffer_load_dwordx4 v[4:7], v1, s[12:15], 0 offen")
    a("buffer_load_dwordx4 v[8:11], v2, s[16:19], 0 offen")
    a("s_waitcnt vmcnt(1)")
    for j in range(4):
        a(f"v_lshlrev_b32 v{12+2*j}, 16, v{4+j}")
        a(f"v_and_b32 v{13+2*j}, 0xffff0000, v{4+j}")
    a("v_add_f32 v20, v12, v13")
    for i in range(2, 8):
        a(f"v_add_f32 v20, v20, v{12+i}")
    allreduce_add(a, 20, 21)
    a("v_mul_f32 v20, 0x3b000000, v20")
    a("v_sub_f32 v22, v12, v20")
    a("v_mul_f32 v23, v22, v22")
    for i in range(1, 8):
        a(f"v_sub_f32 v22, v{12+i}, v20")
        a("v_fmac_f32 v23, v22, v22")
    allreduce_add(a, 23, 21)
    a("v_mul_f32 v23, 0x3b000000, v23")
    a("v_cvt_pk_bf16_f32 v20, 0, v20")
    a("v_cvt_pk_bf16_f32 v23, 0, v23")
    a("v_add_f32 v23, 0x3727c5ac, v23")
    a("v_cvt_pk_bf16_f32 v23, 0, v23")
    a("v_sqrt_f32 v23, v23")
    a("s_nop 0")
    a("v_cvt_pk_bf16_f32 v23, 0, v23")
    a("v_rcp_f32 v23, v23")
    a("s_nop 0")
    for i in range(8):
        a(f"v_sub_f32 v{12+i}, v{12+i}, v20")
        a(f"v_cvt_pk_bf16_f32 v{12+i}, 0, v{12+i}")
        a(f"v_mul_f32 v{12+i}, v{12+i}, v23")
        a(f"v_cvt_pk_bf16_f32 v{12+i}, 0, v{12+i}")
    for j in range(4):
        a(f"v_cvt_pk_bf16_f32 v{4+j}, v{12+2*j}, v{13+2*j}")
    a("buffer_store_dwordx4 v[4:7], v1, s[20:23], 0 offen")
    a("s_waitcnt vmcnt(1)")
    for j in range(4):
        a(f"v_lshlrev_b32 v{24+2*j}, 16, v{8+j}")
        a(f"v_and_b32 v{25+2*j}, 0xffff0000, v{8+j}")
    a("v_mul_f32 v20, v12, v24")
    for i in range(1, 8):
        a(f"v_fmac_f32 v20, v{12+i}, v{24+i}")
    allreduce_add(a, 20, 21)
    a("v_cvt_pk_bf16_f32 v20, 0, v20")
    a("v_lshlrev_b32 v3, 2, v3")
    a("s_mov_b64 exec, 1")
    a("buffer_store_dword v20, v3, s[24:27], 0 offen")
    a("s_mov_b64 exec, -1")
    a("L_k0_end:")
    kernel_footer(a, K0, 32)
```

```python
from common import *
K1 = "qkv_kernel"
K1_MOD = 43
K1_GRID = K1_MOD + 256
WP, XP = 448, 144
WBYTES = 64*WP
XOFF = WBYTES
BUF = WBYTES + 64*XP
K1_LDS = 2*BUF

def gen_k1_main(a):
    a("s_sub_u32 s33, s2, %d" % K1_MOD)
    a("s_and_b32 s34, s33, 7")
    a("s_lshr_b32 s33, s33, 3")
    a(f"s_load_dwordx2 s[4:5], s[0:1], {KA_WS}")
    a(f"s_load_dwordx2 s[6:7], s[0:1], {KA_WQKV}")
    a("v_lshrrev_b32 v1, 6, v0")
    a("s_nop 0")
    a("v_readfirstlane_b32 s35, v1")
    a("v_and_b32 v2, 63, v0")
    a("v_and_b32 v3, 7, v0")
    a("v_lshlrev_b32 v3, 4, v3")
    a("v_lshrrev_b32 v4, 3, v0")
    a("v_and_b32 v4, 31, v4")
    a("v_mul_u32_u24 v5, 3072, v4")
    a("v_add_u32 v5, v5, v3")
    a(f"v_mul_u32_u24 v6, {WP}, v4")
    a("v_add_u32 v6, v6, v3")
    a("s_lshl_b32 s36, s33, 16")
    a("v_lshlrev_b32 v7, 10, v4")
    a("v_add_u32 v7, v7, v3")
    a("v_add_u32 v7, s36, v7")
    a(f"v_mul_u32_u24 v8, {XP}, v4")
    a("v_add_u32 v8, v8, v3")
    a(f"v_add_u32 v8, {XOFF}, v8")
    a("s_lshl_b32 s37, s34, 7")
    for i in range(6):
        a(f"s_add_u32 s{24+i}, s37, {(i>>1)*1024 + (i&1)*32*3072}")
    a("s_mov_b32 s30, 0")
    a("s_mov_b32 s31, 32768")
    a("s_and_b32 s38, s35, 1")
    a("s_lshr_b32 s39, s35, 1")
    a("v_and_b32 v9, 31, v2")
    a("v_lshrrev_b32 v10, 5, v2")
    a("s_lshl_b32 s40, s38, 5")
    a("v_add_u32 v11, s40, v9")
    a(f"v_mul_u32_u24 v11, {XP}, v11")
    a("v_lshlrev_b32 v12, 4, v10")
    a("v_add_u32 v11, v11, v12")
    a(f"v_add_u32 v11, {XOFF}, v11")
    a("v_and_b32 v12, 15, v2")
    a("v_lshrrev_b32 v13, 2, v12")
    a("v_and_b32 v12, 3, v12")
    a("v_lshlrev_b32 v14, 3, v10")
    a("v_add_u32 v13, v13, v14")
    a(f"v_mul_u32_u24 v13, {WP}, v13")
    a("v_lshrrev_b32 v14, 4, v2")
    a("v_and_b32 v14, 1, v14")
    a("v_lshlrev_b32 v14, 5, v14")
    a("v_lshlrev_b32 v12, 3, v12")
    a("v_add_u32 v13, v13, v14")
    a("v_add_u32 v13, v13, v12")
    a("s_lshl_b32 s40, s39, 6")
    a("v_add_u32 v13, s40, v13")
    a("s_waitcnt lgkmcnt(0)")
    srd(a, 12, 6, 7, D*3*D*2)
    srd(a, 16, 4, 5, S*D*2, WS_XN)
    srd(a, 20, 4, 5, 3*S*D*2, WS_Q)
    for i in range(48):
        a(f"v_mov_b32 v{64+i}, 0")
    ST = 32
    def gload():
        for i in range(6):
            a(f"buffer_load_dwordx4 v[{ST+4*i}:{ST+4*i+3}], v5, s[12:15], s{24+i} offen")
        for i in range(2):
            a(f"buffer_load_dwordx4 v[{ST+24+4*i}:{ST+27+4*i}], v7, s[16:19], s{30+i} offen")
        for i in range(6):
            a(f"s_add_u32 s{24+i}, s{24+i}, {64*3072}")
        for i in range(2):
            a(f"s_add_u32 s{30+i}, s{30+i}, 128")
    def lwrite(buf):
        for i in range(6):
            a(f"ds_write_b128 v6, v[{ST+4*i}:{ST+4*i+3}] offset:{buf*BUF + (i&1)*32*WP + (i>>1)*128}")
        for i in range(2):
            a(f"ds_write_b128 v8, v[{ST+24+4*i}:{ST+27+4*i}] offset:{buf*BUF + i*32*XP}")
    FR = [16, 112]
    def freads(buf, ks, fs):
        b = FR[fs]
        a(f"ds_read_b128 v[{b}:{b+3}], v11 offset:{buf*BUF + ks*32}")
        for t in range(3):
            o = buf*BUF + ks*16*WP + t*128
            a(f"ds_read_b64_tr_b16 v[{b+4+4*t}:{b+5+4*t}], v13 offset:{o}")
            a(f"ds_read_b64_tr_b16 v[{b+6+4*t}:{b+7+4*t}], v13 offset:{o+4*WP}")
    def mfmas(fs):
        b = FR[fs]
        for t in range(3):
            acc = 64 + 16*t
            w = f"v[{b+4+4*t}:{b+7+4*t}]"; x = f"v[{b}:{b+3}]"
            if t < 2: a(f"v_mfma_f32_32x32x16_bf16 v[{acc}:{acc+15}], {w}, {x}, v[{acc}:{acc+15}]")
            else:     a(f"v_mfma_f32_32x32x16_bf16 v[{acc}:{acc+15}], {x}, {w}, v[{acc}:{acc+15}]")
    gload()
    a("s_waitcnt vmcnt(0)")
    lwrite(0)
    a("s_waitcnt lgkmcnt(0)")
    a("s_barrier")
    for c in range(8):
        buf = c & 1
        if c < 7: gload()
        freads(buf, 0, 0)
        for ks in range(4):
            if ks < 3: freads(buf, ks+1, (ks+1)&1)
            a(f"s_waitcnt lgkmcnt({7 if ks < 3 else 0})")
            mfmas(ks & 1)
        if c < 7:
            a("s_waitcnt vmcnt(0)")
            lwrite(buf ^ 1)
            a("s_waitcnt lgkmcnt(0)")
            a("s_barrier")
    a("s_nop 15")
    a("s_nop 15")
    a("s_lshl_b32 s40, s34, 2")
    a("s_lshl_b32 s41, s39, 1")
    a("s_add_u32 s40, s40, s41")
    a("s_lshl_b32 s41, s33, 6")
    a("s_lshl_b32 s42, s38, 5")
    a("s_add_u32 s41, s41, s42")
    a("v_add_u32 v3, s41, v9")
    a("v_lshlrev_b32 v3, 5, v3")
    a("v_lshlrev_b32 v4, 4, v10")
    a("v_add_u32 v3, v3, v4")
    a("s_lshl_b32 s42, s40, 16")
    a("v_add_u32 v3, s42, v3")
    a("s_mov_b32 s43, 65536")
    a(f"s_mov_b32 s44, {S*D*2}")
    a(f"s_mov_b32 s45, {S*D*2 + 65536}")
    for t in range(2):
        acc = 64 + 16*t
        for p in range(8):
            a(f"v_cvt_pk_bf16_f32 v{16+p}, v{acc+2*p}, v{acc+2*p+1}")
        a(f"buffer_store_dwordx4 v[16:19], v3, s[20:23], {'0' if t==0 else 's44'} offen")
        a(f"buffer_store_dwordx4 v[20:23], v3, s[20:23], {'s43' if t==0 else 's45'} offen")
        a("s_nop 1")
    a("v_lshrrev_b32 v3, 4, v9")
    a("v_lshlrev_b32 v3, 16, v3")
    a("v_and_b32 v4, 15, v9")
    a("v_lshlrev_b32 v4, 6, v4")
    a("v_add_u32 v3, v3, v4")
    a("v_lshlrev_b32 v4, 4, v10")
    a("v_add_u32 v3, v3, v4")
    a("s_lshl_b32 s41, s33, 1")
    a("s_add_u32 s41, s41, s38")
    a("s_lshl_b32 s41, s41, 10")
    a("s_lshl_b32 s42, s40, 16")
    a("s_add_u32 s41, s41, s42")
    a(f"s_add_u32 s41, s41, {2*S*D*2}")
    acc = 64 + 32
    for p in range(8):
        a(f"v_cvt_pk_bf16_f32 v{16+p}, v{acc+2*p}, v{acc+2*p+1}")
    a("buffer_store_dwordx4 v[16:19], v3, s[20:23], s41 offen")
    a("buffer_store_dwordx4 v[20:23], v3, s[20:23], s41 offen offset:32")

def gen_k1(a):
    kernel_header(a, K1)
    a(f"s_cmp_ge_u32 s2, {K1_GRID}")
    a("s_cbranch_scc1 L_k1_end")
    a(f"s_cmp_lt_u32 s2, {K1_MOD}")
    a("s_cbranch_scc1 L_k1_mod")
    gen_k1_main(a)
    a("s_branch L_k1_end")
    a("L_k1_mod:")
    try:
        import mod1
        mod1.gen_mod1(a)
    except ImportError:
        pass
    a("L_k1_end:")
    kernel_footer(a, K1, 256)
```

```python
from common import *
import struct, math
K2 = "attn_kernel"
K2_MOD = 16
K2_GRID = K2_MOD + 512
K2_BLOCK = 256
K2_LDS = 0
CF = 0.25*math.log2(math.e)
CF_HEX = "0x%08x" % struct.unpack("<I", struct.pack("<f", CF))[0]
NCF_HEX = "0x%08x" % struct.unpack("<I", struct.pack("<f", -CF))[0]
VQ = 4; KB = [8, 12]; VB = [[16, 20], [24, 28]]; OA = 32; SS = [48, 64]; PP = 80; NEG = 88
T0, T1 = 89, 90
VKO, VVO = 1, 2

def rowmax(a, s, dst):
    a(f"v_max3_f32 v{dst}, v{s}, v{s+1}, v{s+2}")
    for i in range(3, 15, 2):
        a(f"v_max3_f32 v{dst}, v{dst}, v{s+i}, v{s+i+1}")
    a(f"v_max_f32 v{dst}, v{dst}, v{s+15}")

def tile(a, p, SCALE_ROUND=True):
    q = 1 - p
    a("s_waitcnt vmcnt(5)")
    a(f"v_mfma_f32_32x32x16_bf16 v[{SS[q]}:{SS[q]+15}], v[{KB[q]}:{KB[q]+3}], v[{VQ}:{VQ+3}], 0")
    a(f"buffer_load_dwordx4 v[{KB[q]}:{KB[q]+3}], v{VKO}, s[12:15], s40 offen")
    a("s_add_u32 s40, s40, 1024")
    s = SS[p]
    for i in range(16):
        a(f"v_cvt_pk_bf16_f32 v{s+i}, 0, v{s+i}")
    for i in range(0, 16, 2):
        a(f"v_pk_fma_f32 v[{s+i}:{s+i+1}], v[{s+i}:{s+i+1}], s[44:45], v[{NEG}:{NEG+1}] op_sel_hi:[1,0,0]")
    for i in range(16):
        a(f"v_exp_f32 v{s+i}, v{s+i}")
    for j in range(8):
        a(f"v_cvt_pk_bf16_f32 v{PP+j}, v{s+2*j}, v{s+2*j+1}")
    a("s_waitcnt vmcnt(4)")
    a("s_nop 0")
    a(f"v_mfma_f32_32x32x16_bf16 v[{OA}:{OA+15}], v[{VB[p][0]}:{VB[p][0]+3}], v[{PP}:{PP+3}], v[{OA}:{OA+15}]")
    a(f"v_mfma_f32_32x32x16_bf16 v[{OA}:{OA+15}], v[{VB[p][1]}:{VB[p][1]+3}], v[{PP+4}:{PP+7}], v[{OA}:{OA+15}]")
    a("s_mov_b64 exec, s[46:47]")
    a(f"buffer_load_dwordx4 v[{VB[p][0]}:{VB[p][0]+3}], v{VVO}, s[16:19], s41 offen")
    a(f"buffer_load_dwordx4 v[{VB[p][1]}:{VB[p][1]+3}], v{VVO}, s[16:19], s41 offen offset:32")
    a("s_mov_b64 exec, -1")
    a("s_add_u32 s41, s41, 1024")

def gen_k2_main(a):
    a(f"s_sub_u32 s33, s2, {K2_MOD}")
    a("s_and_b32 s34, s33, 7")
    a("s_lshr_b32 s33, s33, 3")
    a("s_lshr_b32 s35, s33, 4")
    a("s_lshl_b32 s35, s35, 3")
    a("s_add_u32 s35, s35, s34")
    a("s_and_b32 s36, s33, 15")
    a(f"s_load_dwordx2 s[4:5], s[0:1], {KA_WS}")
    a("v_lshrrev_b32 v3, 6, v0")
    a("s_nop 0")
    a("v_readfirstlane_b32 s37, v3")
    a("v_and_b32 v3, 63, v0")
    a(f"v_and_b32 v{VKO}, 31, v3")
    a(f"v_lshlrev_b32 v{VKO}, 5, v{VKO}")
    a("v_lshrrev_b32 v91, 5, v3")
    a("v_lshlrev_b32 v91, 4, v91")
    a(f"v_add_u32 v{VKO}, v{VKO}, v91")
    a(f"v_and_b32 v{VVO}, 15, v3")
    a(f"v_lshlrev_b32 v{VVO}, 6, v{VVO}")
    a(f"v_add_u32 v{VVO}, v{VVO}, v91")
    a("s_lshl_b32 s38, s36, 2")
    a("s_add_u32 s38, s38, s37")
    a("s_lshl_b32 s39, s35, 16")
    a("s_waitcnt lgkmcnt(0)")
    for (sr, off) in ((12, WS_K), (16, WS_VT), (20, WS_Q), (24, WS_O)):
        a(f"s_add_u32 s{sr}, s4, s39")
        a(f"s_addc_u32 s{sr+1}, s5, 0")
        a(f"s_add_u32 s{sr}, s{sr}, {off}")
        a(f"s_addc_u32 s{sr+1}, s{sr+1}, 0")
        a(f"s_and_b32 s{sr+1}, s{sr+1}, 0xffff")
        a(f"s_mov_b32 s{sr+2}, 65536")
        a(f"s_mov_b32 s{sr+3}, 0x00020000")
    a(f"s_mov_b32 s44, {CF_HEX}")
    a(f"s_mov_b32 s45, {CF_HEX}")
    a("s_mov_b32 s46, 0x0000ffff")
    a("s_mov_b32 s47, 0x0000ffff")
    a("s_lshl_b32 s42, s38, 10")
    a(f"buffer_load_dwordx4 v[{VQ}:{VQ+3}], v{VKO}, s[20:23], s42 offen")
    a("s_mov_b32 s48, 0")
    a("L_k2_start:")
    for i in range(16):
        a(f"v_mov_b32 v{OA+i}, 0")
    for b in VB:
        for r in b:
            for i in range(4):
                a(f"v_mov_b32 v{r+i}, 0x3f803f80")
    a(f"buffer_load_dwordx4 v[{KB[0]}:{KB[0]+3}], v{VKO}, s[12:15], 0 offen")
    a(f"buffer_load_dwordx4 v[{KB[1]}:{KB[1]+3}], v{VKO}, s[12:15], 0 offen offset:1024")
    a("s_mov_b64 exec, s[46:47]")
    a(f"buffer_load_dwordx4 v[{VB[0][0]}:{VB[0][0]+3}], v{VVO}, s[16:19], 0 offen")
    a(f"buffer_load_dwordx4 v[{VB[0][1]}:{VB[0][1]+3}], v{VVO}, s[16:19], 0 offen offset:32")
    a("s_mov_b64 exec, -1")
    a("s_waitcnt vmcnt(3)")
    a(f"v_mfma_f32_32x32x16_bf16 v[{SS[0]}:{SS[0]+15}], v[{KB[0]}:{KB[0]+3}], v[{VQ}:{VQ+3}], 0")
    a(f"buffer_load_dwordx4 v[{KB[0]}:{KB[0]+3}], v{VKO}, s[12:15], 0 offen offset:2048")
    a("s_mov_b64 exec, s[46:47]")
    a(f"buffer_load_dwordx4 v[{VB[1][0]}:{VB[1][0]+3}], v{VVO}, s[16:19], 0 offen offset:1024")
    a(f"buffer_load_dwordx4 v[{VB[1][1]}:{VB[1][1]+3}], v{VVO}, s[16:19], 0 offen offset:1056")
    a("s_mov_b64 exec, -1")
    a("s_mov_b32 s40, 3072")
    a("s_mov_b32 s41, 2048")
    a("s_cmp_eq_u32 s48, 1")
    a("s_cbranch_scc1 L_k2_loop0")
    a("s_nop 15")
    rowmax(a, SS[0], T0)
    a(f"v_mov_b32 v{T1}, v{T0}")
    a("s_nop 1")
    a(f"v_permlane32_swap_b32 v{T0}, v{T1}")
    a(f"v_max_f32 v{T0}, v{T0}, v{T1}")
    a(f"v_cvt_pk_bf16_f32 v{T0}, 0, v{T0}")
    a(f"v_mul_f32 v{NEG}, {NCF_HEX}, v{T0}")
    a("L_k2_loop0:")
    a("s_mov_b32 s43, 0")
    a("L_k2_loop:")
    tile(a, 0)
    tile(a, 1)
    a("s_add_u32 s43, s43, 1")
    a("s_cmp_lt_u32 s43, 32")
    a("s_cbranch_scc1 L_k2_loop")
    a("s_waitcnt vmcnt(0)")
    a("s_nop 15")
    a(f"v_add_f32 v{T0}, abs(v{OA}), abs(v{OA+1})")
    for i in range(2, 9):
        a(f"v_add_f32 v{T0}, v{T0}, abs(v{OA+i})")
    a(f"v_mov_b32 v{T1}, 0x207")
    a(f"v_cmp_class_f32 vcc, v{T0}, v{T1}")
    a("s_cmp_eq_u32 s48, 1")
    a("s_cbranch_scc1 L_k2_store")
    a("s_cbranch_vccnz L_k2_exact")
    a("L_k2_store:")
    a(f"v_rcp_f32 v{T0}, v{OA+8}")
    a("s_nop 0")
    for i in range(8):
        a(f"v_mul_f32 v{OA+i}, v{OA+i}, v{T0}")
    for j in range(4):
        a(f"v_cvt_pk_bf16_f32 v{PP+j}, v{OA+2*j}, v{OA+2*j+1}")
    a(f"buffer_store_dwordx4 v[{PP}:{PP+3}], v{VKO}, s[24:27], s42 offen")
    a("s_branch L_k2_end")
    a("L_k2_exact:")
    a(f"v_mov_b32 v{T0}, 0xff800000")
    a("s_mov_b32 s40, 0")
    a("L_k2_p1:")
    a(f"buffer_load_dwordx4 v[{KB[0]}:{KB[0]+3}], v{VKO}, s[12:15], s40 offen")
    a("s_waitcnt vmcnt(0)")
    a(f"v_mfma_f32_32x32x16_bf16 v[{SS[0]}:{SS[0]+15}], v[{KB[0]}:{KB[0]+3}], v[{VQ}:{VQ+3}], 0")
    a("s_nop 15")
    rowmax(a, SS[0], T1)
    a(f"v_max_f32 v{T0}, v{T0}, v{T1}")
    a("s_add_u32 s40, s40, 1024")
    a("s_cmp_lt_u32 s40, 65536")
    a("s_cbranch_scc1 L_k2_p1")
    a(f"v_mov_b32 v{T1}, v{T0}")
    a("s_nop 1")
    a(f"v_permlane32_swap_b32 v{T0}, v{T1}")
    a(f"v_max_f32 v{T0}, v{T0}, v{T1}")
    a(f"v_cvt_pk_bf16_f32 v{T0}, 0, v{T0}")
    a(f"v_mul_f32 v{NEG}, {NCF_HEX}, v{T0}")
    a("s_mov_b32 s48, 1")
    a("s_branch L_k2_start")

def gen_k2(a):
    kernel_header(a, K2)
    a(f"s_cmp_ge_u32 s2, {K2_GRID}")
    a("s_cbranch_scc1 L_k2_end")
    a(f"s_cmp_lt_u32 s2, {K2_MOD}")
    a("s_cbranch_scc1 L_k2_mod")
    gen_k2_main(a)
    a("L_k2_mod:")
    try:
        import mod2
        mod2.gen_mod2(a)
    except ImportError:
        pass
    a("L_k2_end:")
    kernel_footer(a, K2, 128)
```

```python
from common import *
K3 = "outproj_kernel"
K3_GRID = 256
WP3 = 192
K3_LDS = 512*WP3

def gen_k3(a):
    kernel_header(a, K3)
    a(f"s_cmp_ge_u32 s2, {K3_GRID}")
    a("s_cbranch_scc1 L_k3_end")
    a("s_and_b32 s34, s2, 7")
    a("s_lshr_b32 s33, s2, 3")
    a(f"s_load_dwordx2 s[4:5], s[0:1], {KA_WS}")
    a(f"s_load_dwordx2 s[6:7], s[0:1], {KA_WO}")
    a(f"s_load_dwordx2 s[8:9], s[0:1], {KA_X}")
    a(f"s_load_dwordx2 s[10:11], s[0:1], {KA_OUT}")
    a("v_lshrrev_b32 v1, 6, v0")
    a("s_nop 0")
    a("v_readfirstlane_b32 s35, v1")
    a("v_and_b32 v2, 63, v0")
    a("s_and_b32 s38, s35, 1")
    a("s_lshr_b32 s39, s35, 1")
    a("v_and_b32 v9, 31, v2")
    a("v_lshrrev_b32 v10, 5, v2")
    a("s_waitcnt lgkmcnt(0)")
    srd(a, 12, 6, 7, D*D*2)
    srd(a, 16, 4, 5, S*D*2, WS_O)
    srd(a, 20, 8, 9, S*D*2)
    srd(a, 24, 4, 5, S*D*2, WS_XN)
    srd(a, 28, 10, 11, S*D*2)
    a("s_lshl_b32 s40, s33, 6")
    a("s_lshl_b32 s41, s38, 5")
    a("s_add_u32 s40, s40, s41")
    a("v_add_u32 v3, s40, v9")
    a("v_lshlrev_b32 v4, 5, v3")
    a("v_lshlrev_b32 v5, 4, v10")
    a("v_add_u32 v4, v4, v5")
    a("s_mov_b32 s42, 0")
    for hd in range(32):
        a(f"buffer_load_dwordx4 v[{64+4*hd}:{67+4*hd}], v4, s[16:19], s42 offen")
        a("s_add_u32 s42, s42, 65536")
    a("v_lshlrev_b32 v6, 10, v3")
    a("v_lshlrev_b32 v5, 3, v10")
    a("v_add_u32 v6, v6, v5")
    a("s_lshl_b32 s42, s34, 7")
    a("s_lshl_b32 s43, s39, 6")
    a("s_add_u32 s42, s42, s43")
    a("v_add_u32 v6, s42, v6")
    for g in range(4):
        a(f"buffer_load_dwordx2 v[{48+2*g}:{49+2*g}], v6, s[20:23], 0 offen offset:{16*g}")
        a(f"buffer_load_dwordx2 v[{56+2*g}:{57+2*g}], v6, s[24:27], 0 offen offset:{16*g}")
    a("v_and_b32 v7, 7, v0")
    a("v_lshlrev_b32 v7, 4, v7")
    a("v_lshrrev_b32 v8, 3, v0")
    a("v_lshlrev_b32 v11, 10, v8")
    a("v_add_u32 v11, v11, v7")
    a(f"v_mul_u32_u24 v12, {WP3}, v8")
    a("v_add_u32 v12, v12, v7")
    a(f"v_add_u32 v13, {8*32*WP3}, v12")
    a("s_lshl_b32 s42, s34, 7")
    for i in range(16):
        a(f"buffer_load_dwordx4 v[{192+4*i}:{195+4*i}], v11, s[12:15], s42 offen")
        a("s_add_u32 s42, s42, 32768")
    for i in range(16):
        a(f"v_mov_b32 v{32+i}, 0")
    a("v_and_b32 v14, 15, v2")
    a("v_lshrrev_b32 v15, 2, v14")
    a("v_and_b32 v14, 3, v14")
    a("v_lshlrev_b32 v5, 2, v10")
    a("v_add_u32 v15, v15, v5")
    a(f"v_mul_u32_u24 v15, {WP3}, v15")
    a("v_lshrrev_b32 v5, 4, v2")
    a("v_and_b32 v5, 1, v5")
    a("v_lshlrev_b32 v5, 5, v5")
    a("v_lshlrev_b32 v14, 3, v14")
    a("v_add_u32 v15, v15, v5")
    a("v_add_u32 v15, v15, v14")
    a("s_lshl_b32 s43, s39, 6")
    a("v_add_u32 v15, s43, v15")
    a(f"v_add_u32 v14, {16*16*WP3}, v15")
    a("s_waitcnt vmcnt(0)")
    for i in range(16):
        base = "v12" if i < 8 else "v13"
        a(f"ds_write_b128 {base}, v[{192+4*i}:{195+4*i}] offset:{(i&7)*32*WP3}")
    a("s_waitcnt lgkmcnt(0)")
    a("s_barrier")
    def rd(hd, fb):
        base = "v15" if hd < 16 else "v14"
        o = (hd & 15)*16*WP3
        a(f"ds_read_b64_tr_b16 v[{fb}:{fb+1}], {base} offset:{o}")
        a(f"ds_read_b64_tr_b16 v[{fb+2}:{fb+3}], {base} offset:{o + 8*WP3}")
    rd(0, 16)
    for hd in range(32):
        fb = 16 + 4*(hd & 1)
        if hd < 31: rd(hd+1, 16 + 4*((hd+1)&1))
        a(f"s_waitcnt lgkmcnt({2 if hd < 31 else 0})")
        a(f"v_mfma_f32_32x32x16_bf16 v[32:47], v[{fb}:{fb+3}], v[{64+4*hd}:{67+4*hd}], v[32:47]")
    a("s_add_u32 s36, s4, %d" % WS_IDX)
    a("s_addc_u32 s37, s5, 0")
    a("s_load_dwordx8 s[48:55], s[36:37], 0")
    a("v_mov_b32 v16, -1")
    a("s_waitcnt lgkmcnt(0)")
    for j in range(8):
        a(f"v_cmp_eq_u32 vcc, s{48+j}, v3")
        a("s_nop 1")
        a(f"v_cndmask_b32 v16, v16, {j}, vcc")
    a("s_nop 15")
    for r in range(16):
        a(f"v_cvt_pk_bf16_f32 v{32+r}, 0, v{32+r}")
    for g in range(4):
        for e in range(2):
            a(f"v_lshlrev_b32 v{64+4*g+2*e}, 16, v{48+2*g+e}")
            a(f"v_and_b32 v{65+4*g+2*e}, 0xffff0000, v{48+2*g+e}")
            a(f"v_lshlrev_b32 v{80+4*g+2*e}, 16, v{56+2*g+e}")
            a(f"v_and_b32 v{81+4*g+2*e}, 0xffff0000, v{56+2*g+e}")
    for r in range(16):
        a(f"v_add_f32 v{32+r}, v{64+r}, v{32+r}")
        a(f"v_cvt_pk_bf16_f32 v{32+r}, 0, v{32+r}")
    a("v_cmp_le_i32 vcc, 0, v16")
    a("s_cbranch_vccz L_k3_nosel")
    srd(a, 56, 4, 5, 8*D*2, WS_UPD)
    a("v_lshlrev_b32 v17, 10, v16")
    a("v_lshlrev_b32 v5, 3, v10")
    a("v_add_u32 v17, v17, v5")
    a("s_lshl_b32 s42, s34, 7")
    a("s_lshl_b32 s43, s39, 6")
    a("s_add_u32 s42, s42, s43")
    a("v_add_u32 v17, s42, v17")
    a("s_and_saveexec_b64 s[60:61], vcc")
    for g in range(4):
        a(f"buffer_load_dwordx2 v[{48+2*g}:{49+2*g}], v17, s[56:59], 0 offen offset:{16*g}")
    a("s_waitcnt vmcnt(0)")
    for g in range(4):
        for e in range(2):
            a(f"v_lshlrev_b32 v18, 16, v{48+2*g+e}")
            a(f"v_and_b32 v19, 0xffff0000, v{48+2*g+e}")
            a(f"v_add_f32 v{80+4*g+2*e}, v{80+4*g+2*e}, v18")
            a(f"v_add_f32 v{81+4*g+2*e}, v{81+4*g+2*e}, v19")
            a(f"v_cvt_pk_bf16_f32 v{80+4*g+2*e}, 0, v{80+4*g+2*e}")
            a(f"v_cvt_pk_bf16_f32 v{81+4*g+2*e}, 0, v{81+4*g+2*e}")
    a("s_mov_b64 exec, s[60:61]")
    a("L_k3_nosel:")
    for r in range(16):
        a(f"v_add_f32 v{32+r}, v{32+r}, v{80+r}")
    for g in range(4):
        a(f"v_cvt_pk_bf16_f32 v{48+2*g}, v{32+4*g}, v{33+4*g}")
        a(f"v_cvt_pk_bf16_f32 v{49+2*g}, v{34+4*g}, v{35+4*g}")
        a(f"buffer_store_dwordx2 v[{48+2*g}:{49+2*g}], v6, s[28:31], 0 offen offset:{16*g}")
    a("L_k3_end:")
    kernel_footer(a, K3, 256)
```

```python
from common import *
def allreduce_max_u32(a, v, t):
    for r in (8, 4, 2, 1):
        a("s_nop 1")
        a(f"v_max_u32_dpp v{v}, v{v}, v{v} row_ror:{r} row_mask:0xf bank_mask:0xf")
    a(f"v_mov_b32 v{t}, v{v}")
    a("s_nop 1")
    a(f"v_permlane16_swap_b32 v{v}, v{t}")
    a(f"v_max_u32 v{v}, v{v}, v{t}")
    a(f"v_mov_b32 v{t}, v{v}")
    a("s_nop 1")
    a(f"v_permlane32_swap_b32 v{v}, v{t}")
    a(f"v_max_u32 v{v}, v{v}, v{t}")

def gen_mod1(a):
    a(f"s_load_dwordx2 s[4:5], s[0:1], {KA_WS}")
    a(f"s_load_dwordx2 s[6:7], s[0:1], {KA_WG}")
    a(f"s_load_dwordx2 s[8:9], s[0:1], {KA_WU}")
    a("v_lshrrev_b32 v1, 6, v0")
    a("s_nop 0")
    a("v_readfirstlane_b32 s35, v1")
    a("v_and_b32 v2, 63, v0")
    a("s_waitcnt lgkmcnt(0)")
    srd(a, 12, 6, 7, D*F*2)
    srd(a, 16, 8, 9, D*F*2)
    srd(a, 20, 4, 5, S*4, WS_R)
    srd(a, 24, 4, 5, S*D*2, WS_XN)
    srd(a, 28, 4, 5, 86*1024, WS_H)
    a("v_lshlrev_b32 v3, 4, v2")
    a("v_add_u32 v9, 4096, v3")
    for i in range(8):
        a(f"buffer_load_dwordx4 v[{128+4*i}:{131+4*i}], {'v3' if i < 4 else 'v9'}, s[20:23], 0 offen offset:{1024*(i&3)}")
    a("v_and_b32 v4, 3, v0")
    a("v_lshlrev_b32 v4, 4, v4")
    a("v_lshrrev_b32 v5, 2, v0")
    a("s_mov_b32 s36, 2752")
    a("v_mul_lo_u32 v6, v5, s36")
    a("v_add_u32 v6, v6, v4")
    a("v_lshlrev_b32 v7, 6, v5")
    a("v_add_u32 v7, v7, v4")
    a("s_lshl_b32 s37, s2, 6")
    for i in range(8):
        a(f"buffer_load_dwordx4 v[{64+4*i}:{67+4*i}], v6, s[12:15], s37 offen")
        a(f"buffer_load_dwordx4 v[{96+4*i}:{99+4*i}], v6, s[16:19], s37 offen")
        a(f"s_add_u32 s37, s37, {64*2752}")
    a("s_cmp_lg_u32 s35, 0")
    a("s_cbranch_scc1 L_m1_stage")
    a("s_waitcnt vmcnt(16)")
    a("v_lshlrev_b32 v8, 2, v2")
    a("s_mov_b32 s38, 0x80000000")
    for i in range(8):
        for e in range(4):
            rg = 128 + 4*i + e
            a(f"v_ashrrev_i32 v9, 31, v{rg}")
            a("v_or_b32 v9, s38, v9")
            a(f"v_xor_b32 v{rg}, v{rg}, v9")
            a(f"v_and_b32 v{rg}, 0xffff0000, v{rg}")
            a(f"v_sub_u32 v9, {2047 - i*256 - e}, v8")
            a(f"v_or_b32 v{rg}, v{rg}, v9")
    for rnd in range(8):
        if rnd:
            for k in range(32):
                a(f"v_sub_u32 v{128+k}, v{128+k}, v10")
        a("v_max3_u32 v10, v128, v129, v130")
        for k in range(3, 31, 2):
            a(f"v_max3_u32 v10, v10, v{128+k}, v{129+k}")
        a("v_max_u32 v10, v10, v159")
        allreduce_max_u32(a, 10, 11)
        a("s_nop 0")
        a(f"v_readfirstlane_b32 s39, v10")
        a("s_nop 1")
        if rnd == 0: a("s_mov_b32 s40, s39")
        else:        a("s_add_u32 s40, s40, s39")
        a(f"s_mov_b32 s{60+rnd}, s40")
    for j in range(8):
        a(f"s_and_b32 s41, s{60+j}, 0x7ff")
        a(f"s_sub_u32 s{70+j}, 2047, s41")
    a("v_mov_b32 v12, 0")
    for j in range(8):
        a(f"v_writelane_b32 v12, s{70+j}, {j}")
        a(f"v_writelane_b32 v12, s{70+j}, {32+j}")
    a("s_cmp_lg_u32 s2, 0")
    a("s_cbranch_scc1 L_m1_nopub")
    a("v_mov_b32 v13, 0")
    for j in range(8):
        a(f"s_and_b32 s41, s{60+j}, 0xffff0000")
        a("s_xor_b32 s42, s41, 0x80000000")
        a("s_not_b32 s43, s41")
        a("s_and_b32 s43, s43, 0xffff0000")
        a("s_cmp_ge_u32 s41, 0x80000000")
        a("s_cselect_b32 s41, s42, s43")
        a(f"v_writelane_b32 v13, s41, {j}")
    a("v_mul_f32 v14, 0xbfb8aa3b, v13")
    a("v_exp_f32 v14, v14")
    a("s_nop 0")
    a("v_add_f32 v14, 1.0, v14")
    a("v_rcp_f32 v14, v14")
    a("s_nop 0")
    a("v_cvt_pk_bf16_f32 v14, 0, v14")
    srd(a, 44, 4, 5, 64, WS_IDX)
    a("v_lshlrev_b32 v15, 2, v2")
    a("s_mov_b64 exec, 0xff")
    a("buffer_store_dword v12, v15, s[44:47], 0 offen")
    a("buffer_store_dword v14, v15, s[44:47], 0 offen offset:32")
    a("s_mov_b64 exec, -1")
    a("L_m1_nopub:")
    a("v_lshlrev_b32 v12, 10, v12")
    a("v_lshrrev_b32 v13, 5, v2")
    a("v_lshlrev_b32 v13, 4, v13")
    a("v_add_u32 v12, v12, v13")
    a("s_mov_b32 exec_lo, 0xff")
    a("s_mov_b32 exec_hi, 0xff")
    for ks in range(32):
        a(f"buffer_load_dwordx4 v[{128+4*ks}:{131+4*ks}], v12, s[24:27], 0 offen offset:{32*ks}")
    a("s_mov_b64 exec, -1")
    a("L_m1_stage:")
    a("s_waitcnt vmcnt(0)") if False else None
    a("s_cmp_lg_u32 s35, 0")
    a("s_cbranch_scc1 L_m1_w123")
    a("s_waitcnt vmcnt(32)")
    a("s_branch L_m1_wr")
    a("L_m1_w123:")
    a("s_waitcnt vmcnt(0)")
    a("L_m1_wr:")
    for i in range(8):
        a(f"ds_write_b128 v7, v[{64+4*i}:{67+4*i}] offset:{i*4096}")
        a(f"ds_write_b128 v7, v[{96+4*i}:{99+4*i}] offset:{32768 + i*4096}")
    a("s_waitcnt lgkmcnt(0)")
    a("s_barrier")
    a("s_cmp_lg_u32 s35, 0")
    a("s_cbranch_scc1 L_k1_end")
    a("v_and_b32 v14, 15, v2")
    a("v_lshrrev_b32 v15, 2, v14")
    a("v_and_b32 v14, 3, v14")
    a("v_lshrrev_b32 v13, 5, v2")
    a("v_lshlrev_b32 v13, 3, v13")
    a("v_add_u32 v15, v15, v13")
    a("v_lshlrev_b32 v15, 6, v15")
    a("v_lshrrev_b32 v13, 4, v2")
    a("v_and_b32 v13, 1, v13")
    a("v_lshlrev_b32 v13, 5, v13")
    a("v_lshlrev_b32 v14, 3, v14")
    a("v_add_u32 v15, v15, v13")
    a("v_add_u32 v15, v15, v14")
    for i in range(32):
        a(f"v_mov_b32 v{32+i}, 0")
    a("s_waitcnt vmcnt(0)")
    for ks in range(32):
        a(f"ds_read_b64_tr_b16 v[16:17], v15 offset:{ks*1024}")
        a(f"ds_read_b64_tr_b16 v[18:19], v15 offset:{ks*1024+256}")
        a(f"ds_read_b64_tr_b16 v[20:21], v15 offset:{32768+ks*1024}")
        a(f"ds_read_b64_tr_b16 v[22:23], v15 offset:{32768+ks*1024+256}")
        a("s_waitcnt lgkmcnt(2)")
        a(f"v_mfma_f32_32x32x16_bf16 v[32:47], v[16:19], v[{128+4*ks}:{131+4*ks}], v[32:47]")
        a("s_waitcnt lgkmcnt(0)")
        a(f"v_mfma_f32_32x32x16_bf16 v[48:63], v[20:23], v[{128+4*ks}:{131+4*ks}], v[48:63]")
    a("s_nop 15")
    a("s_nop 3")
    for r in range(16):
        g = 32 + r; u = 48 + r
        a(f"v_cvt_pk_bf16_f32 v{g}, 0, v{g}")
        a(f"v_mul_f32 v16, 0xbfb8aa3b, v{g}")
        a("v_exp_f32 v16, v16")
        a("s_nop 0")
        a("v_add_f32 v16, 1.0, v16")
        a("v_rcp_f32 v16, v16")
        a("s_nop 0")
        a(f"v_mul_f32 v{g}, v{g}, v16")
        a(f"v_cvt_pk_bf16_f32 v{g}, 0, v{g}")
        a(f"v_cvt_pk_bf16_f32 v{u}, 0, v{u}")
        a(f"v_mul_f32 v{g}, v{g}, v{u}")
    for p in range(8):
        a(f"v_cvt_pk_bf16_f32 v{16+p}, v{32+2*p}, v{33+2*p}")
    a("v_lshlrev_b32 v3, 4, v2")
    a("s_lshl_b32 s37, s2, 11")
    a("buffer_store_dwordx4 v[16:19], v3, s[28:31], s37 offen")
    a("buffer_store_dwordx4 v[20:23], v3, s[28:31], s37 offen offset:1024")
```

```python
from common import *
def gen_mod2(a):
    a("v_lshrrev_b32 v1, 6, v0")
    a("s_nop 0")
    a("v_readfirstlane_b32 s35, v1")
    a("s_cmp_lg_u32 s35, 0")
    a("s_cbranch_scc1 L_k2_end")
    a(f"s_load_dwordx2 s[4:5], s[0:1], {KA_WS}")
    a(f"s_load_dwordx2 s[6:7], s[0:1], {KA_WD}")
    a("v_and_b32 v2, 63, v0")
    a("s_waitcnt lgkmcnt(0)")
    srd(a, 12, 6, 7, F*D*2)
    srd(a, 16, 4, 5, 86*1024, WS_H)
    srd(a, 20, 4, 5, 64, WS_IDX)
    srd(a, 24, 4, 5, 8*D*2, WS_UPD)
    a("v_and_b32 v3, 31, v2")
    a("v_lshlrev_b32 v3, 1, v3")
    a("v_lshrrev_b32 v4, 5, v2")
    a("v_lshlrev_b32 v4, 12, v4")
    a("v_add_u32 v3, v3, v4")
    a("s_lshl_b32 s36, s2, 6")
    a("v_add_u32 v3, s36, v3")
    a("v_lshlrev_b32 v5, 4, v2")
    for i in range(16):
        a(f"v_mov_b32 v{32+i}, 0")
    a("s_mov_b32 s37, 0")
    a("s_mov_b32 s38, 0")
    NB = 2
    def loads(b):
        for kk in range(NB):
            fb = 64 + 12*(b*NB + kk)
            for i in range(4):
                a(f"buffer_load_ushort v{fb + i}, v3, s[12:15], s37 offen offset:{i*1024}")
            a("s_add_u32 s39, s37, 8192")
            for i in range(4):
                a(f"buffer_load_ushort v{fb + 4 + i}, v3, s[12:15], s39 offen offset:{i*1024}")
            a(f"buffer_load_dwordx4 v[{fb+8}:{fb+11}], v5, s[16:19], s38 offen")
            a("s_add_u32 s37, s37, 16384")
            a("s_add_u32 s38, s38, 1024")
    def comp(b, n):
        for kk in range(n):
            fb = 64 + 12*(b*NB + kk)
            for p in range(4):
                a(f"v_lshl_or_b32 v{16+p}, v{fb+2*p+1}, 16, v{fb+2*p}")
            a("s_nop 1")
            a(f"v_mfma_f32_32x32x16_bf16 v[32:47], v[16:19], v[{fb+8}:{fb+11}], v[32:47]")
    loads(0)
    a("s_mov_b32 s43, 0")
    a("L_m2_loop:")
    loads(1)
    a(f"s_waitcnt vmcnt({9*NB})")
    comp(0, NB)
    loads(0)
    a(f"s_waitcnt vmcnt({9*NB})")
    comp(1, NB)
    a("s_add_u32 s43, s43, 1")
    a("s_cmp_lt_u32 s43, 21")
    a("s_cbranch_scc1 L_m2_loop")
    a("s_waitcnt vmcnt(0)")
    comp(0, NB)
    a("s_nop 15")
    a("s_nop 3")
    a("v_and_b32 v6, 31, v2")
    a("v_lshlrev_b32 v6, 2, v6")
    a("s_mov_b32 exec_lo, 0xff")
    a("s_mov_b32 exec_hi, 0xff")
    a("buffer_load_dword v7, v6, s[20:23], 0 offen offset:32")
    a("s_waitcnt vmcnt(0)")
    for r in range(16):
        a(f"v_cvt_pk_bf16_f32 v{32+r}, 0, v{32+r}")
        a(f"v_mul_f32 v{32+r}, v{32+r}, v7")
    a("v_and_b32 v6, 31, v2")
    a("v_lshlrev_b32 v6, 10, v6")
    a("v_lshrrev_b32 v4, 5, v2")
    a("v_lshlrev_b32 v4, 3, v4")
    a("v_add_u32 v6, v6, v4")
    a("v_add_u32 v6, s36, v6")
    for g in range(4):
        a(f"v_cvt_pk_bf16_f32 v{48+2*g}, v{32+4*g}, v{33+4*g}")
        a(f"v_cvt_pk_bf16_f32 v{49+2*g}, v{34+4*g}, v{35+4*g}")
        a(f"buffer_store_dwordx2 v[{48+2*g}:{49+2*g}], v6, s[24:27], 0 offen offset:{16*g}")
    a("s_mov_b64 exec, -1")
```

```python
import sys, importlib
from common import *
import k0
def build(kernels):
    a = Asm()
    hdr = []
    for (name, grid, block, lds) in kernels:
        hdr.append(f"; @launch kernel={name} grid=({grid},1,1) block=({block},1,1) lds={lds}")
    a.lines = hdr + ['.amdgcn_target "amdgcn-amd-amdhsa--gfx950"', ".text"]
    return a
if __name__ == "__main__":
    out = sys.argv[1] if len(sys.argv) > 1 else "cur.s"
    ks = [(k0.K0, k0.K0_GRID, 256, 0)]
    gens = [k0.gen_k0]
    try:
        import k1; ks.append((k1.K1, k1.K1_GRID, 256, k1.K1_LDS)); gens.append(k1.gen_k1)
        import k2; ks.append((k2.K2, k2.K2_GRID, k2.K2_BLOCK, k2.K2_LDS)); gens.append(k2.gen_k2)
        import k3; ks.append((k3.K3, k3.K3_GRID, 256, k3.K3_LDS)); gens.append(k3.gen_k3)
    except ImportError as e:
        print("note:", e)
    a = build(ks)
    for g in gens: g(a)
    open(out, "w").write(a.text())
    print("wrote", out, len(a.lines), "lines")
```

```python
from common import *
K1 = "qkv_kernel"
K1_MOD = 43
K1_GRID = K1_MOD + 256
WP, XP = 448, 144
WBYTES = 64*WP
XOFF = WBYTES
BUF = WBYTES + 64*XP
K1_LDS = 2*BUF

def gen_k1_main(a):
    a("s_sub_u32 s33, s2, %d" % K1_MOD)
    a("s_and_b32 s34, s33, 7")
    a("s_lshr_b32 s33, s33, 3")
    a(f"s_load_dwordx2 s[4:5], s[0:1], {KA_WS}")
    a(f"s_load_dwordx2 s[6:7], s[0:1], {KA_WQKV}")
    a("v_lshrrev_b32 v1, 6, v0")
    a("s_nop 0")
    a("v_readfirstlane_b32 s35, v1")
    a("v_and_b32 v2, 63, v0")
    a("v_and_b32 v3, 7, v0")
    a("v_lshlrev_b32 v3, 4, v3")
    a("v_lshrrev_b32 v4, 3, v0")
    a("v_and_b32 v4, 31, v4")
    a("v_mul_u32_u24 v5, 3072, v4")
    a("v_add_u32 v5, v5, v3")
    a(f"v_mul_u32_u24 v6, {WP}, v4")
    a("v_add_u32 v6, v6, v3")
    a("s_lshl_b32 s36, s33, 16")
    a("v_lshlrev_b32 v7, 10, v4")
    a("v_add_u32 v7, v7, v3")
    a("v_add_u32 v7, s36, v7")
    a(f"v_mul_u32_u24 v8, {XP}, v4")
    a("v_add_u32 v8, v8, v3")
    a(f"v_add_u32 v8, {XOFF}, v8")
    a("s_lshl_b32 s37, s34, 7")
    for i in range(6):
        a(f"s_add_u32 s{24+i}, s37, {(i>>1)*1024 + (i&1)*32*3072}")
    a("s_mov_b32 s30, 0")
    a("s_mov_b32 s31, 32768")
    a("s_and_b32 s38, s35, 1")
    a("s_lshr_b32 s39, s35, 1")
    a("v_and_b32 v9, 31, v2")
    a("v_lshrrev_b32 v10, 5, v2")
    a("s_lshl_b32 s40, s38, 5")
    a("v_add_u32 v11, s40, v9")
    a(f"v_mul_u32_u24 v11, {XP}, v11")
    a("v_lshlrev_b32 v12, 4, v10")
    a("v_add_u32 v11, v11, v12")
    a(f"v_add_u32 v11, {XOFF}, v11")
    a("v_and_b32 v12, 15, v2")
    a("v_lshrrev_b32 v13, 2, v12")
    a("v_and_b32 v12, 3, v12")
    a("v_lshlrev_b32 v14, 3, v10")
    a("v_add_u32 v13, v13, v14")
    a(f"v_mul_u32_u24 v13, {WP}, v13")
    a("v_lshrrev_b32 v14, 4, v2")
    a("v_and_b32 v14, 1, v14")
    a("v_lshlrev_b32 v14, 5, v14")
    a("v_lshlrev_b32 v12, 3, v12")
    a("v_add_u32 v13, v13, v14")
    a("v_add_u32 v13, v13, v12")
    a("s_lshl_b32 s40, s39, 6")
    a("v_add_u32 v13, s40, v13")
    a("s_waitcnt lgkmcnt(0)")
    srd(a, 12, 6, 7, D*3*D*2)
    srd(a, 16, 4, 5, S*D*2, WS_XN)
    srd(a, 20, 4, 5, 3*S*D*2, WS_Q)
    for i in range(48):
        a(f"v_mov_b32 v{64+i}, 0")
    STG = [128, 160, 192, 224]
    def gload(slot):
        ST = STG[slot]
        for i in range(6):
            a(f"buffer_load_dwordx4 v[{ST+4*i}:{ST+4*i+3}], v5, s[12:15], s{24+i} offen")
        for i in range(2):
            a(f"buffer_load_dwordx4 v[{ST+24+4*i}:{ST+27+4*i}], v7, s[16:19], s{30+i} offen")
        for i in range(6):
            a(f"s_add_u32 s{24+i}, s{24+i}, {64*3072}")
        for i in range(2):
            a(f"s_add_u32 s{30+i}, s{30+i}, 128")
    def lwrite(buf, slot):
        ST = STG[slot]
        for i in range(6):
            a(f"ds_write_b128 v6, v[{ST+4*i}:{ST+4*i+3}] offset:{buf*BUF + (i&1)*32*WP + (i>>1)*128}")
        for i in range(2):
            a(f"ds_write_b128 v8, v[{ST+24+4*i}:{ST+27+4*i}] offset:{buf*BUF + i*32*XP}")
    FR = [16, 112]
    def freads(buf, ks, fs):
        b = FR[fs]
        a(f"ds_read_b128 v[{b}:{b+3}], v11 offset:{buf*BUF + ks*32}")
        for t in range(3):
            o = buf*BUF + ks*16*WP + t*128
            a(f"ds_read_b64_tr_b16 v[{b+4+4*t}:{b+5+4*t}], v13 offset:{o}")
            a(f"ds_read_b64_tr_b16 v[{b+6+4*t}:{b+7+4*t}], v13 offset:{o+4*WP}")
    def mfmas(fs):
        b = FR[fs]
        for t in range(3):
            acc = 64 + 16*t
            w = f"v[{b+4+4*t}:{b+7+4*t}]"; x = f"v[{b}:{b+3}]"
            if t < 2: a(f"v_mfma_f32_32x32x16_bf16 v[{acc}:{acc+15}], {w}, {x}, v[{acc}:{acc+15}]")
            else:     a(f"v_mfma_f32_32x32x16_bf16 v[{acc}:{acc+15}], {x}, {w}, v[{acc}:{acc+15}]")
    for c in range(4): gload(c)
    for c in range(8):
        buf = c & 1
        a(f"s_waitcnt vmcnt({8*(min(c+3,7)-c)})")
        lwrite(buf, c & 3)
        a("s_waitcnt lgkmcnt(0)")
        if c + 4 <= 7: gload(c & 3)
        a("s_barrier")
        freads(buf, 0, 0)
        for ks in range(4):
            if ks < 3: freads(buf, ks+1, (ks+1)&1)
            a(f"s_waitcnt lgkmcnt({7 if ks < 3 else 0})")
            mfmas(ks & 1)
    a("s_nop 15")
    a("s_nop 15")
    a("s_lshl_b32 s40, s34, 2")
    a("s_lshl_b32 s41, s39, 1")
    a("s_add_u32 s40, s40, s41")
    a("s_lshl_b32 s41, s33, 6")
    a("s_lshl_b32 s42, s38, 5")
    a("s_add_u32 s41, s41, s42")
    a("v_add_u32 v3, s41, v9")
    a("v_lshlrev_b32 v3, 5, v3")
    a("v_lshlrev_b32 v4, 4, v10")
    a("v_add_u32 v3, v3, v4")
    a("s_lshl_b32 s42, s40, 16")
    a("v_add_u32 v3, s42, v3")
    a("s_mov_b32 s43, 65536")
    a(f"s_mov_b32 s44, {S*D*2}")
    a(f"s_mov_b32 s45, {S*D*2 + 65536}")
    for t in range(2):
        acc = 64 + 16*t
        for p in range(8):
            a(f"v_cvt_pk_bf16_f32 v{16+p}, v{acc+2*p}, v{acc+2*p+1}")
        a(f"buffer_store_dwordx4 v[16:19], v3, s[20:23], {'0' if t==0 else 's44'} offen")
        a(f"buffer_store_dwordx4 v[20:23], v3, s[20:23], {'s43' if t==0 else 's45'} offen")
        a("s_nop 1")
    a("v_lshrrev_b32 v3, 4, v9")
    a("v_lshlrev_b32 v3, 16, v3")
    a("v_and_b32 v4, 15, v9")
    a("v_lshlrev_b32 v4, 6, v4")
    a("v_add_u32 v3, v3, v4")
    a("v_lshlrev_b32 v4, 4, v10")
    a("v_add_u32 v3, v3, v4")
    a("s_lshl_b32 s41, s33, 1")
    a("s_add_u32 s41, s41, s38")
    a("s_lshl_b32 s41, s41, 10")
    a("s_lshl_b32 s42, s40, 16")
    a("s_add_u32 s41, s41, s42")
    a(f"s_add_u32 s41, s41, {2*S*D*2}")
    acc = 64 + 32
    for p in range(8):
        a(f"v_cvt_pk_bf16_f32 v{16+p}, v{acc+2*p}, v{acc+2*p+1}")
    a("buffer_store_dwordx4 v[16:19], v3, s[20:23], s41 offen")
    a("buffer_store_dwordx4 v[20:23], v3, s[20:23], s41 offen offset:32")

def gen_k1(a):
    kernel_header(a, K1)
    a(f"s_cmp_ge_u32 s2, {K1_GRID}")
    a("s_cbranch_scc1 L_k1_end")
    a(f"s_cmp_lt_u32 s2, {K1_MOD}")
    a("s_cbranch_scc1 L_k1_mod")
    gen_k1_main(a)
    a("s_branch L_k1_end")
    a("L_k1_mod:")
    try:
        import mod1
        mod1.gen_mod1(a)
    except ImportError:
        pass
    a("L_k1_end:")
    kernel_footer(a, K1, 256)
```

```python
from common import *
import struct, math, os
ABL = os.environ.get('K2ABL', '')
K2 = "attn_kernel"
K2_MOD = 16
K2_GRID = K2_MOD + 512
K2_BLOCK = 256
K2_LDS = 0
CF = 0.25*math.log2(math.e)
CF_HEX = "0x%08x" % struct.unpack("<I", struct.pack("<f", CF))[0]
NCF_HEX = "0x%08x" % struct.unpack("<I", struct.pack("<f", -CF))[0]
VQ = 4; KB = [8, 12]; VB = [[16, 20], [24, 28]]; OA = 32; SS = [48, 64]; PP = 80; NEG = 88
T0, T1 = 89, 90
VKO, VVO = 1, 2

def rowmax(a, s, dst):
    a(f"v_max3_f32 v{dst}, v{s}, v{s+1}, v{s+2}")
    for i in range(3, 15, 2):
        a(f"v_max3_f32 v{dst}, v{dst}, v{s+i}, v{s+i+1}")
    a(f"v_max_f32 v{dst}, v{dst}, v{s+15}")

PB = [80, 96]
def tile(a, p, check=False):
    q = 1 - p
    s = SS[p]
    if check:
        a(f"v_cmp_lt_f32 vcc, s49, v{OA+8}")
    a("s_waitcnt vmcnt(5)")
    a(f"v_mfma_f32_32x32x16_bf16 v[{SS[q]}:{SS[q]+15}], v[{KB[q]}:{KB[q]+3}], v[{VQ}:{VQ+3}], 0")
    a(f"buffer_load_dwordx4 v[{KB[q]}:{KB[q]+3}], v{VKO}, s[12:15], s40 offen")
    a("s_add_u32 s40, s40, 1024")
    for i in range(8):
        a(f"v_cvt_pk_bf16_f32 v{s+i}, 0, v{s+i}")
    a("s_waitcnt vmcnt(4)")
    a(f"v_mfma_f32_32x32x16_bf16 v[{OA}:{OA+15}], v[{VB[q][0]}:{VB[q][0]+3}], v[{PB[q]}:{PB[q]+3}], v[{OA}:{OA+15}]")
    for i in range(8, 16):
        a(f"v_cvt_pk_bf16_f32 v{s+i}, 0, v{s+i}")
    a(f"v_mfma_f32_32x32x16_bf16 v[{OA}:{OA+15}], v[{VB[q][1]}:{VB[q][1]+3}], v[{PB[q]+4}:{PB[q]+7}], v[{OA}:{OA+15}]")
    a("s_mov_b64 exec, s[46:47]")
    a(f"buffer_load_dwordx4 v[{VB[q][0]}:{VB[q][0]+3}], v{VVO}, s[16:19], s41 offen")
    a(f"buffer_load_dwordx4 v[{VB[q][1]}:{VB[q][1]+3}], v{VVO}, s[16:19], s41 offen offset:32")
    a("s_mov_b64 exec, -1")
    a("s_add_u32 s41, s41, 1024")
    if check:
        a("s_cbranch_vccz L_k2_nors")
        a("s_nop 15")
        a(f"v_frexp_exp_i32_f32 v{T0}, v{OA+8}")
        a(f"v_add_u32 v{T0}, 64, v{T0}")
        a(f"v_sub_u32 v{T1}, 0, v{T0}")
        for i in range(9):
            a(f"v_ldexp_f32 v{OA+i}, v{OA+i}, v{T1}")
        a(f"v_cvt_f32_i32 v{T0}, v{T0}")
        a(f"v_sub_f32 v{NEG}, v{NEG}, v{T0}")
        a("s_nop 1")
        a("L_k2_nors:")
    for i in range(0, 16, 2):
        a(f"v_pk_fma_f32 v[{s+i}:{s+i+1}], v[{s+i}:{s+i+1}], s[44:45], v[{NEG}:{NEG+1}] op_sel_hi:[1,0,0]")
    for i in range(16):
        a(f"v_exp_f32 v{s+i}, v{s+i}")
    for j in range(8):
        a(f"v_cvt_pk_bf16_f32 v{PB[p]+j}, v{s+2*j}, v{s+2*j+1}")

def gen_k2_main(a):
    a(f"s_sub_u32 s33, s2, {K2_MOD}")
    a("s_and_b32 s34, s33, 7")
    a("s_lshr_b32 s33, s33, 3")
    a("s_lshr_b32 s35, s33, 4")
    a("s_lshl_b32 s35, s35, 3")
    a("s_add_u32 s35, s35, s34")
    a("s_and_b32 s36, s33, 15")
    a(f"s_load_dwordx2 s[4:5], s[0:1], {KA_WS}")
    a("v_lshrrev_b32 v3, 6, v0")
    a("s_nop 0")
    a("v_readfirstlane_b32 s37, v3")
    a("v_and_b32 v3, 63, v0")
    a(f"v_and_b32 v{VKO}, 31, v3")
    a(f"v_lshlrev_b32 v{VKO}, 5, v{VKO}")
    a("v_lshrrev_b32 v91, 5, v3")
    a("v_lshlrev_b32 v91, 4, v91")
    a(f"v_add_u32 v{VKO}, v{VKO}, v91")
    a(f"v_and_b32 v{VVO}, 15, v3")
    a(f"v_lshlrev_b32 v{VVO}, 6, v{VVO}")
    a(f"v_add_u32 v{VVO}, v{VVO}, v91")
    a("s_lshl_b32 s38, s36, 2")
    a("s_add_u32 s38, s38, s37")
    a("s_lshl_b32 s39, s35, 16")
    a("s_waitcnt lgkmcnt(0)")
    for (sr, off) in ((12, WS_K), (16, WS_VT), (20, WS_Q), (24, WS_O)):
        a(f"s_add_u32 s{sr}, s4, s39")
        a(f"s_addc_u32 s{sr+1}, s5, 0")
        a(f"s_add_u32 s{sr}, s{sr}, {off}")
        a(f"s_addc_u32 s{sr+1}, s{sr+1}, 0")
        a(f"s_and_b32 s{sr+1}, s{sr+1}, 0xffff")
        a(f"s_mov_b32 s{sr+2}, 65536")
        a(f"s_mov_b32 s{sr+3}, 0x00020000")
    a(f"s_mov_b32 s44, {CF_HEX}")
    a(f"s_mov_b32 s45, {CF_HEX}")
    a("s_mov_b32 s46, 0x0000ffff")
    a("s_mov_b32 s47, 0x0000ffff")
    a("s_lshl_b32 s42, s38, 10")
    a(f"buffer_load_dwordx4 v[{VQ}:{VQ+3}], v{VKO}, s[20:23], s42 offen")
    a("s_mov_b32 s48, 0")
    a("L_k2_start:")
    for i in range(16):
        a(f"v_mov_b32 v{OA+i}, 0")
    for b in VB:
        for r in b:
            for i in range(4):
                a(f"v_mov_b32 v{r+i}, 0x3f803f80")
    for i in range(8):
        a(f"v_mov_b32 v{PB[1]+i}, 0")
    a(f"buffer_load_dwordx4 v[{KB[0]}:{KB[0]+3}], v{VKO}, s[12:15], 0 offen")
    a(f"buffer_load_dwordx4 v[{KB[1]}:{KB[1]+3}], v{VKO}, s[12:15], 0 offen offset:1024")
    a("s_mov_b64 exec, s[46:47]")
    a(f"buffer_load_dwordx4 v[{VB[1][0]}:{VB[1][0]+3}], v{VVO}, s[16:19], 0 offen")
    a(f"buffer_load_dwordx4 v[{VB[1][1]}:{VB[1][1]+3}], v{VVO}, s[16:19], 0 offen offset:32")
    a("s_mov_b64 exec, -1")
    a("s_waitcnt vmcnt(3)")
    a(f"v_mfma_f32_32x32x16_bf16 v[{SS[0]}:{SS[0]+15}], v[{KB[0]}:{KB[0]+3}], v[{VQ}:{VQ+3}], 0")
    a(f"buffer_load_dwordx4 v[{KB[0]}:{KB[0]+3}], v{VKO}, s[12:15], 0 offen offset:2048")
    a("s_mov_b64 exec, s[46:47]")
    a(f"buffer_load_dwordx4 v[{VB[0][0]}:{VB[0][0]+3}], v{VVO}, s[16:19], 0 offen")
    a(f"buffer_load_dwordx4 v[{VB[0][1]}:{VB[0][1]+3}], v{VVO}, s[16:19], 0 offen offset:32")
    a("s_mov_b64 exec, -1")
    a("s_mov_b32 s40, 3072")
    a("s_mov_b32 s41, 1024")
    a("s_mov_b32 s49, 0x33800000")
    a("s_cmp_eq_u32 s48, 1")
    a("s_cbranch_scc1 L_k2_loop0")
    a("s_nop 15")
    rowmax(a, SS[0], T0)
    a(f"v_mov_b32 v{T1}, v{T0}")
    a("s_nop 1")
    a(f"v_permlane32_swap_b32 v{T0}, v{T1}")
    a(f"v_max_f32 v{T0}, v{T0}, v{T1}")
    a(f"v_cvt_pk_bf16_f32 v{T0}, 0, v{T0}")
    a(f"v_mul_f32 v{NEG}, {NCF_HEX}, v{T0}")
    a(f"v_add_f32 v{NEG}, 0xc2800000, v{NEG}")
    a("L_k2_loop0:")
    a("s_mov_b32 s43, 0")
    a("L_k2_loop:")
    tile(a, 0, check=True)
    tile(a, 1)
    a("s_add_u32 s43, s43, 1")
    a("s_cmp_lt_u32 s43, 32")
    a("s_cbranch_scc1 L_k2_loop")
    a("s_waitcnt vmcnt(0)")
    a(f"v_mfma_f32_32x32x16_bf16 v[{OA}:{OA+15}], v[{VB[1][0]}:{VB[1][0]+3}], v[{PB[1]}:{PB[1]+3}], v[{OA}:{OA+15}]")
    a(f"v_mfma_f32_32x32x16_bf16 v[{OA}:{OA+15}], v[{VB[1][1]}:{VB[1][1]+3}], v[{PB[1]+4}:{PB[1]+7}], v[{OA}:{OA+15}]")
    a("s_nop 15")
    a(f"v_add_f32 v{T0}, abs(v{OA}), abs(v{OA+1})")
    for i in range(2, 9):
        a(f"v_add_f32 v{T0}, v{T0}, abs(v{OA+i})")
    a(f"v_mov_b32 v{T1}, 0x207")
    a(f"v_cmp_class_f32 vcc, v{T0}, v{T1}")
    a("s_cmp_eq_u32 s48, 1")
    a("s_cbranch_scc1 L_k2_store")
    if 'noexact' not in ABL: a("s_cbranch_vccnz L_k2_exact")
    a("L_k2_store:")
    a(f"v_rcp_f32 v{T0}, v{OA+8}")
    a("s_nop 0")
    for i in range(8):
        a(f"v_mul_f32 v{OA+i}, v{OA+i}, v{T0}")
    for j in range(4):
        a(f"v_cvt_pk_bf16_f32 v{PP+j}, v{OA+2*j}, v{OA+2*j+1}")
    a(f"buffer_store_dwordx4 v[{PP}:{PP+3}], v{VKO}, s[24:27], s42 offen")
    a("s_branch L_k2_end")
    a("L_k2_exact:")
    if 'cnt' in ABL:
        a(f"s_load_dwordx2 s[50:51], s[0:1], {KA_DBG}")
        a("s_waitcnt lgkmcnt(0)")
        a("s_mov_b32 s52, 1")
        a("s_atomic_add s52, s[50:51], 0 glc")
        a("s_waitcnt lgkmcnt(0)")
    a(f"v_mov_b32 v{T0}, 0xff800000")
    a("s_mov_b32 s40, 0")
    a("L_k2_p1:")
    a(f"buffer_load_dwordx4 v[{KB[0]}:{KB[0]+3}], v{VKO}, s[12:15], s40 offen")
    a("s_waitcnt vmcnt(0)")
    a(f"v_mfma_f32_32x32x16_bf16 v[{SS[0]}:{SS[0]+15}], v[{KB[0]}:{KB[0]+3}], v[{VQ}:{VQ+3}], 0")
    a("s_nop 15")
    rowmax(a, SS[0], T1)
    a(f"v_max_f32 v{T0}, v{T0}, v{T1}")
    a("s_add_u32 s40, s40, 1024")
    a("s_cmp_lt_u32 s40, 65536")
    a("s_cbranch_scc1 L_k2_p1")
    a(f"v_mov_b32 v{T1}, v{T0}")
    a("s_nop 1")
    a(f"v_permlane32_swap_b32 v{T0}, v{T1}")
    a(f"v_max_f32 v{T0}, v{T0}, v{T1}")
    a(f"v_cvt_pk_bf16_f32 v{T0}, 0, v{T0}")
    a(f"v_mul_f32 v{NEG}, {NCF_HEX}, v{T0}")
    a(f"v_add_f32 v{NEG}, 0xc2800000, v{NEG}")
    a("s_mov_b32 s48, 1")
    a("s_branch L_k2_start")

def gen_k2(a):
    kernel_header(a, K2)
    a(f"s_cmp_ge_u32 s2, {K2_GRID}")
    a("s_cbranch_scc1 L_k2_end")
    a(f"s_cmp_lt_u32 s2, {K2_MOD}")
    a("s_cbranch_scc1 L_k2_mod")
    gen_k2_main(a)
    a("L_k2_mod:")
    try:
        import mod2
        mod2.gen_mod2(a)
    except ImportError:
        pass
    a("L_k2_end:")
    kernel_footer(a, K2, 128)
```

```python
from common import *
K3 = "outproj_kernel"
K3_GRID = 256
WP3 = 192
K3_LDS = 512*WP3

def gen_k3(a):
    kernel_header(a, K3)
    a(f"s_cmp_ge_u32 s2, {K3_GRID}")
    a("s_cbranch_scc1 L_k3_end")
    a("s_lshr_b32 s34, s2, 3")
    a("s_and_b32 s34, s34, 7")
    a("s_lshr_b32 s33, s2, 6")
    a("s_lshl_b32 s33, s33, 3")
    a("s_and_b32 s36, s2, 7")
    a("s_or_b32 s33, s33, s36")
    a(f"s_load_dwordx2 s[4:5], s[0:1], {KA_WS}")
    a(f"s_load_dwordx2 s[6:7], s[0:1], {KA_WO}")
    a(f"s_load_dwordx2 s[8:9], s[0:1], {KA_X}")
    a(f"s_load_dwordx2 s[10:11], s[0:1], {KA_OUT}")
    a("v_lshrrev_b32 v1, 6, v0")
    a("s_nop 0")
    a("v_readfirstlane_b32 s35, v1")
    a("v_and_b32 v2, 63, v0")
    a("s_and_b32 s38, s35, 1")
    a("s_lshr_b32 s39, s35, 1")
    a("v_and_b32 v9, 31, v2")
    a("v_lshrrev_b32 v10, 5, v2")
    a("s_waitcnt lgkmcnt(0)")
    srd(a, 12, 6, 7, D*D*2)
    srd(a, 16, 4, 5, S*D*2, WS_O)
    srd(a, 20, 8, 9, S*D*2)
    srd(a, 24, 4, 5, S*D*2, WS_XN)
    srd(a, 28, 10, 11, S*D*2)
    a("s_lshl_b32 s40, s33, 6")
    a("s_lshl_b32 s41, s38, 5")
    a("s_add_u32 s40, s40, s41")
    a("v_add_u32 v3, s40, v9")
    a("v_lshlrev_b32 v4, 5, v3")
    a("v_lshlrev_b32 v5, 4, v10")
    a("v_add_u32 v4, v4, v5")
    a("s_mov_b32 s42, 0")
    for hd in range(32):
        a(f"buffer_load_dwordx4 v[{64+4*hd}:{67+4*hd}], v4, s[16:19], s42 offen")
        a("s_add_u32 s42, s42, 65536")
    a("v_lshlrev_b32 v6, 10, v3")
    a("v_lshlrev_b32 v5, 3, v10")
    a("v_add_u32 v6, v6, v5")
    a("s_lshl_b32 s42, s34, 7")
    a("s_lshl_b32 s43, s39, 6")
    a("s_add_u32 s42, s42, s43")
    a("v_add_u32 v6, s42, v6")
    for g in range(4):
        a(f"buffer_load_dwordx2 v[{48+2*g}:{49+2*g}], v6, s[20:23], 0 offen offset:{16*g}")
        a(f"buffer_load_dwordx2 v[{56+2*g}:{57+2*g}], v6, s[24:27], 0 offen offset:{16*g}")
    a("v_and_b32 v7, 7, v0")
    a("v_lshlrev_b32 v7, 4, v7")
    a("v_lshrrev_b32 v8, 3, v0")
    a("v_lshlrev_b32 v11, 10, v8")
    a("v_add_u32 v11, v11, v7")
    a(f"v_mul_u32_u24 v12, {WP3}, v8")
    a("v_add_u32 v12, v12, v7")
    a(f"v_add_u32 v13, {8*32*WP3}, v12")
    a("s_lshl_b32 s42, s34, 7")
    for i in range(16):
        a(f"buffer_load_dwordx4 v[{192+4*i}:{195+4*i}], v11, s[12:15], s42 offen")
        a("s_add_u32 s42, s42, 32768")
    for i in range(16):
        a(f"v_mov_b32 v{32+i}, 0")
    a("v_and_b32 v14, 15, v2")
    a("v_lshrrev_b32 v15, 2, v14")
    a("v_and_b32 v14, 3, v14")
    a("v_lshlrev_b32 v5, 2, v10")
    a("v_add_u32 v15, v15, v5")
    a(f"v_mul_u32_u24 v15, {WP3}, v15")
    a("v_lshrrev_b32 v5, 4, v2")
    a("v_and_b32 v5, 1, v5")
    a("v_lshlrev_b32 v5, 5, v5")
    a("v_lshlrev_b32 v14, 3, v14")
    a("v_add_u32 v15, v15, v5")
    a("v_add_u32 v15, v15, v14")
    a("s_lshl_b32 s43, s39, 6")
    a("v_add_u32 v15, s43, v15")
    a(f"v_add_u32 v14, {16*16*WP3}, v15")
    a("s_waitcnt vmcnt(0)")
    for i in range(16):
        base = "v12" if i < 8 else "v13"
        a(f"ds_write_b128 {base}, v[{192+4*i}:{195+4*i}] offset:{(i&7)*32*WP3}")
    a("s_waitcnt lgkmcnt(0)")
    a("s_barrier")
    def rd(hd, fb):
        base = "v15" if hd < 16 else "v14"
        o = (hd & 15)*16*WP3
        a(f"ds_read_b64_tr_b16 v[{fb}:{fb+1}], {base} offset:{o}")
        a(f"ds_read_b64_tr_b16 v[{fb+2}:{fb+3}], {base} offset:{o + 8*WP3}")
    rd(0, 16)
    for hd in range(32):
        fb = 16 + 4*(hd & 1)
        if hd < 31: rd(hd+1, 16 + 4*((hd+1)&1))
        a(f"s_waitcnt lgkmcnt({2 if hd < 31 else 0})")
        a(f"v_mfma_f32_32x32x16_bf16 v[32:47], v[{fb}:{fb+3}], v[{64+4*hd}:{67+4*hd}], v[32:47]")
    a("s_add_u32 s36, s4, %d" % WS_IDX)
    a("s_addc_u32 s37, s5, 0")
    a("s_load_dwordx8 s[48:55], s[36:37], 0")
    a("v_mov_b32 v16, -1")
    a("s_waitcnt lgkmcnt(0)")
    for j in range(8):
        a(f"v_cmp_eq_u32 vcc, s{48+j}, v3")
        a("s_nop 1")
        a(f"v_cndmask_b32 v16, v16, {j}, vcc")
    a("s_nop 15")
    for r in range(16):
        a(f"v_cvt_pk_bf16_f32 v{32+r}, 0, v{32+r}")
    for g in range(4):
        for e in range(2):
            a(f"v_lshlrev_b32 v{64+4*g+2*e}, 16, v{48+2*g+e}")
            a(f"v_and_b32 v{65+4*g+2*e}, 0xffff0000, v{48+2*g+e}")
            a(f"v_lshlrev_b32 v{80+4*g+2*e}, 16, v{56+2*g+e}")
            a(f"v_and_b32 v{81+4*g+2*e}, 0xffff0000, v{56+2*g+e}")
    for r in range(16):
        a(f"v_add_f32 v{32+r}, v{64+r}, v{32+r}")
        a(f"v_cvt_pk_bf16_f32 v{32+r}, 0, v{32+r}")
    a("v_cmp_le_i32 vcc, 0, v16")
    a("s_cbranch_vccz L_k3_nosel")
    srd(a, 56, 4, 5, 8*D*2, WS_UPD)
    a("v_lshlrev_b32 v17, 10, v16")
    a("v_lshlrev_b32 v5, 3, v10")
    a("v_add_u32 v17, v17, v5")
    a("s_lshl_b32 s42, s34, 7")
    a("s_lshl_b32 s43, s39, 6")
    a("s_add_u32 s42, s42, s43")
    a("v_add_u32 v17, s42, v17")
    a("s_and_saveexec_b64 s[60:61], vcc")
    for g in range(4):
        a(f"buffer_load_dwordx2 v[{48+2*g}:{49+2*g}], v17, s[56:59], 0 offen offset:{16*g}")
    a("s_waitcnt vmcnt(0)")
    for g in range(4):
        for e in range(2):
            a(f"v_lshlrev_b32 v18, 16, v{48+2*g+e}")
            a(f"v_and_b32 v19, 0xffff0000, v{48+2*g+e}")
            a(f"v_add_f32 v{80+4*g+2*e}, v{80+4*g+2*e}, v18")
            a(f"v_add_f32 v{81+4*g+2*e}, v{81+4*g+2*e}, v19")
            a(f"v_cvt_pk_bf16_f32 v{80+4*g+2*e}, 0, v{80+4*g+2*e}")
            a(f"v_cvt_pk_bf16_f32 v{81+4*g+2*e}, 0, v{81+4*g+2*e}")
    a("s_mov_b64 exec, s[60:61]")
    a("L_k3_nosel:")
    for r in range(16):
        a(f"v_add_f32 v{32+r}, v{32+r}, v{80+r}")
    for g in range(4):
        a(f"v_cvt_pk_bf16_f32 v{48+2*g}, v{32+4*g}, v{33+4*g}")
        a(f"v_cvt_pk_bf16_f32 v{49+2*g}, v{34+4*g}, v{35+4*g}")
        a(f"buffer_store_dwordx2 v[{48+2*g}:{49+2*g}], v6, s[28:31], 0 offen offset:{16*g}")
    a("L_k3_end:")
    kernel_footer(a, K3, 256)
```
